```python
import torch

def _softmax(x, axis=-1):
    return torch.softmax(x, dim=axis)
def _gelu(x):
    return torch.nn.functional.gelu(x, approximate="tanh")
def _silu(x):
    return torch.nn.functional.silu(x)
def _sigmoid(x):
    return torch.sigmoid(x)
def _layernorm(x, axis=-1, eps=1e-5):
    m = x.mean(dim=axis, keepdim=True)
    v = x.var(dim=axis, keepdim=True, unbiased=False)
    return (x - m) / torch.sqrt(v + eps)
def _scatter_add(tgt, idx, src, axis=0):
    return tgt.clone().index_add_(axis, idx, src)
def _segment_sum(src, seg, n):
    out = torch.zeros((n,) + src.shape[1:], dtype=src.dtype)
    return out.index_add_(0, seg, src)
def _pad(x, pw):
    flat = tuple(v for pair in reversed(pw) for v in pair)
    return torch.nn.functional.pad(x, flat)

kernel_name = 'interleave_layers__ssm_conv_h3__swiglu_ffn__prompt'

def setup_inputs():

    _w = (lambda a: (lambda t: t.to(torch.bfloat16) if t.is_floating_point() else t)(torch.as_tensor(a)))
    def _A_setup():
        B, S, D = 1, 2048, 512
        ks = 4
        return {
            "q": _w((lambda *s: torch.randn(*s, dtype=torch.bfloat16) * 0.05)(B, S, D)),
            "k": _w((lambda *s: torch.randn(*s, dtype=torch.bfloat16) * 0.8)(B, S, D)),
            "v": _w((lambda *s: torch.randn(*s, dtype=torch.bfloat16) * 0.8)(B, S, D)),
            "shift_k": _w((lambda *s: torch.randn(*s, dtype=torch.bfloat16) * 0.8)(D, ks) * 0.5),
            "ssm_k": _w((lambda *s: torch.randn(*s, dtype=torch.bfloat16) * 0.8)(D, S) * (1.0 / S ** 0.5)),
            "ssm_D": _w((lambda *s: torch.randn(*s, dtype=torch.bfloat16) * 0.8)(D)),
        }
    _A_in = _A_setup()

    def _B_setup():
        B, S, D, F = 1, 2048, 512, 1376
        return {
            "x": _w((lambda *s: torch.randn(*s, dtype=torch.bfloat16) * 0.05)(B, S, D)),
            "w_gate": _w((lambda *s: torch.randn(*s, dtype=torch.bfloat16) * 0.1)(D, F)),
            "w_up": _w((lambda *s: torch.randn(*s, dtype=torch.bfloat16) * 0.1)(D, F)),
            "w_down": _w((lambda *s: torch.randn(*s, dtype=torch.bfloat16) * 0.1)(F, D)),
        }
    _B_in = _B_setup()

    return {
        "A_q": _A_in["q"],
        "A_k": _A_in["k"],
        "A_v": _A_in["v"],
        "A_shift_k": _A_in["shift_k"],
        "A_ssm_k": _A_in["ssm_k"],
        "A_ssm_D": _A_in["ssm_D"],
        "B_x": _B_in["x"],
        "B_w_gate": _B_in["w_gate"],
        "B_w_up": _B_in["w_up"],
        "B_w_down": _B_in["w_down"],
    }

def reference(A_q, A_k, A_v, A_shift_k, A_ssm_k, A_ssm_D, B_x, B_w_gate, B_w_up, B_w_down):
    def _A_ref(q, k, v, shift_k, ssm_k, ssm_D):
        B, S, D = q.shape
        ks = shift_k.shape[-1]
        k_pad = _pad(k, ((0, 0), (ks - 1, 0), (0, 0)))
        k_shift = torch.zeros_like(k)
        for t in range(ks):
            k_shift = k_shift + k_pad[:, t:t + S, :] * shift_k[:, ks - 1 - t][None, None, :]
        kv = k_shift * v
        L = 2 * S
        kv_pad = _pad(kv, ((0, 0), (0, S), (0, 0)))
        kf_pad = _pad(ssm_k, ((0, 0), (0, S)))
        kv_f = (lambda x, axes=(-2,-1): torch.fft.rfft2(x.float(), dim=axes))(kv_pad[:, None, :, :], axes=(1, 2))
        kf_f = (lambda x, axes=(-2,-1): torch.fft.rfft2(x.float(), dim=axes))(kf_pad[:, None, :], axes=(1, 2))
        kf_f = (lambda x, *d: x.permute(*d))(kf_f, 1, 2, 0)
        y_f = kv_f * kf_f[None, :, :, :]
        y = (lambda x, s, axes=(-2,-1): torch.fft.irfft2(x, s=s, dim=axes).to(torch.bfloat16))(y_f, (1, L), axes=(1, 2))[:, 0, :S, :]
        y = y + kv * ssm_D[None, None, :]
        return q * y

    def _B_ref(x, w_gate, w_up, w_down):
        g = _silu(x @ w_gate)
        u = x @ w_up
        return (g * u) @ w_down

    x = A_q
    x = x + _A_ref(_layernorm(x, axis=-1), A_k, A_v, A_shift_k, A_ssm_k, A_ssm_D)
    x = x + _B_ref(_layernorm(x, axis=-1), B_w_gate, B_w_up, B_w_down)
    x = x + _A_ref(_layernorm(x, axis=-1), A_k, A_v, A_shift_k, A_ssm_k, A_ssm_D)
    x = x + _B_ref(_layernorm(x, axis=-1), B_w_gate, B_w_up, B_w_down)
    return x
```

```python
class Asm:
    def __init__(self):
        self.lines = []
        self.uid = 0
    def __call__(self, s):
        for ln in s.strip('\n').split('\n'):
            self.lines.append('    ' + ln.strip() if not ln.strip().endswith(':') else ln.strip())
    def label(self, base):
        self.uid += 1
        return f"L_{base}_{self.uid}"
    def text(self):
        return '\n'.join(self.lines) + '\n'

KVT = 0x0
Z   = 0x200000
X1  = 0x400000
X2  = 0x600000
X3  = 0x800000
HP  = 0xA00000
WP1 = 0x1000000
WP2 = 0x1400000
WS_BYTES = 0x1800000

def srd(a, s, base_lo, base_hi, nbytes):
    a(f"s_mov_b32 s{s}, s{base_lo}")
    a(f"s_mov_b32 s{s+1}, s{base_hi}")
    a(f"s_mov_b32 s{s+2}, {nbytes}")
    a(f"s_mov_b32 s{s+3}, 0x00020000")

def kernel_desc(name, vgpr, accum=None, sgpr=102):
    if accum is None:
        accum = (vgpr + 3) // 4 * 4
    return f""".amdhsa_kernel {name}
  .amdhsa_next_free_vgpr {vgpr}
  .amdhsa_next_free_sgpr {sgpr}
  .amdhsa_accum_offset {accum}
  .amdhsa_group_segment_fixed_size 0
  .amdhsa_kernarg_size 104
  .amdhsa_user_sgpr_count 2
  .amdhsa_user_sgpr_kernarg_segment_ptr 1
  .amdhsa_system_sgpr_workgroup_id_x 1
  .amdhsa_float_denorm_mode_32 3
.end_amdhsa_kernel
"""
```

```python
from common import *

QS = 4160 + 32
QCH = 8 * QS
UCH = 2048 + 4096
QBASE = 0
UBASE = 2 * QCH
RBASE = UBASE + 2 * UCH
CONV_LDS = RBASE + 16384

def gen_conv(a):
    a("conv_kernel:")
    a("s_cmp_ge_u32 s2, 256")
    a("s_cbranch_scc1 L_conv_done")
    a("s_load_dwordx2 s[4:5], s[0:1], 32")
    a("s_load_dwordx2 s[6:7], s[0:1], 40")
    a("s_load_dwordx2 s[8:9], s[0:1], 96")
    a("s_waitcnt lgkmcnt(0)")
    a("s_lshl_b32 s3, s2, 13")
    a("s_add_u32 s4, s4, s3")
    a("s_addc_u32 s5, s5, 0")
    srd(a, 12, 4, 5, 8192)
    srd(a, 16, 6, 7, 1024)
    srd(a, 20, 8, 9, WS_BYTES)
    a("v_lshlrev_b32 v1, 4, v0")
    a(f"v_add_u32 v2, s3, v1")
    a("buffer_load_dwordx4 v[4:7], v2, s[20:23], 0 offen")
    a("v_add_u32 v2, 4096, v2")
    a("buffer_load_dwordx4 v[8:11], v2, s[20:23], 0 offen")
    a("v_mov_b32 v12, 0")
    a("v_mov_b32 v13, 0")
    a("v_mov_b32 v14, 0")
    a("v_mov_b32 v15, 0")
    a("v_lshrrev_b32 v3, 7, v0")
    a("v_and_b32 v16, 127, v0")
    a(f"v_mul_u32_u24 v3, {UCH}, v3")
    a("v_lshl_add_u32 v3, v16, 4, v3")
    a(f"v_add_u32 v3, {UBASE}, v3")
    a(f"ds_write_b128 v3, v[12:15]")
    a("s_waitcnt vmcnt(0)")
    a(f"v_add_u32 v1, {UBASE+2048}, v1")
    a(f"ds_write_b128 v1, v[4:7]")
    a(f"ds_write_b128 v1, v[8:11] offset:{UCH}")
    a("s_mov_b32 s30, 0x03020504")
    a("s_mov_b32 s31, 0x01000302")
    for it in range(3):
        a(f"v_add_u32 v1, {256*it}, v0")
        if it == 2:
            a("v_cmp_gt_u32 vcc, 520, v1")
            a("s_and_saveexec_b64 s[24:25], vcc")
            a("s_cbranch_execz L_conv_qdone")
        a("v_cmp_le_u32 vcc, 260, v1")
        a("s_nop 1")
        a("v_cndmask_b32 v2, 0, 1, vcc")
        a("v_mul_u32_u24 v3, 260, v2")
        a("v_sub_u32 v3, v1, v3")
        a("v_lshlrev_b32 v16, 3, v3")
        a("v_sub_u32 v17, 2040, v16")
        a("v_sub_u32 v18, 2048, v16")
        a("v_mov_b32 v20, -1")
        for (e, dst) in ((17, 4), (18, 8)):
            a(f"v_lshlrev_b32 v19, 1, v{e}")
            a("v_lshl_add_u32 v19, v2, 12, v19")
            a(f"v_cmp_gt_u32 vcc, 2048, v{e}")
            a("s_nop 1")
            a("v_cndmask_b32 v19, v20, v19, vcc")
            a(f"buffer_load_dwordx4 v[{dst}:{dst+3}], v19, s[12:15], 0 offen")
        a(f"v_mul_u32_u24 v21, {QCH}, v2")
        a("v_lshl_add_u32 v21, v3, 4, v21")
        a("s_waitcnt vmcnt(0)")
        for cp in range(8):
            for d in range(4):
                x = 8 + cp - 2*d
                if x % 2 == 0:
                    a(f"v_perm_b32 v{24+d}, v{4+x//2}, v{4+x//2-1}, s30")
                else:
                    a(f"v_perm_b32 v{24+d}, v{4+(x-1)//2}, v{4+(x-1)//2}, s31")
            a(f"ds_write_b128 v21, v[24:27] offset:{QBASE + cp*QS}")
            a("s_nop 1")
    a("L_conv_qdone:")
    a("s_mov_b64 exec, -1")
    a("s_waitcnt lgkmcnt(0)")
    a("s_barrier")
    a("v_lshrrev_b32 v1, 6, v0")
    a("s_nop 0")
    a("v_readfirstlane_b32 s26, v1")
    a("s_nop 3")
    a("s_lshr_b32 s27, s26, 1")
    a("s_and_b32 s28, s26, 1")
    a("v_and_b32 v1, 63, v0")
    a("v_and_b32 v2, 31, v1")
    a("v_lshrrev_b32 v3, 5, v1")
    a("v_and_b32 v4, 7, v2")
    a(f"v_mul_u32_u24 v4, {QS}, v4")
    a("v_lshrrev_b32 v5, 3, v2")
    a("v_sub_u32 v5, v3, v5")
    a("v_lshlrev_b32 v5, 4, v5")
    a("v_add_u32 v4, v4, v5")
    a(f"s_mul_i32 s29, s27, {QCH}")
    a(f"s_add_u32 s29, s29, {QBASE + 4096}")
    a("s_lshl_b32 s24, s28, 6")
    a("s_sub_u32 s29, s29, s24")
    a("v_add_u32 v4, s29, v4")
    a("v_lshlrev_b32 v5, 6, v2")
    a("v_lshl_add_u32 v5, v3, 4, v5")
    a(f"s_mul_i32 s29, s27, {UCH}")
    a(f"s_add_u32 s29, s29, {UBASE + 2048}")
    a("s_sub_u32 s29, s29, s24")
    a("v_add_u32 v5, s29, v5")
    for r in range(32):
        a(f"v_mov_b32 v{64+r}, 0")
    a("s_mov_b32 s25, 16")
    a("L_conv_loop1:")
    a("ds_read_b128 v[8:11], v4 offset:0")
    a("ds_read_b128 v[12:15], v4 offset:32")
    a("ds_read_b128 v[16:19], v5 offset:0")
    a("ds_read_b128 v[20:23], v5 offset:32")
    a("ds_read_b128 v[24:27], v5 offset:2048")
    a("ds_read_b128 v[28:31], v5 offset:2080")
    a("v_subrev_u32 v4, 128, v4")
    a("v_subrev_u32 v5, 128, v5")
    a("s_waitcnt lgkmcnt(0)")
    a("v_mfma_f32_32x32x16_bf16 v[64:79], v[8:11], v[16:19], v[64:79]")
    a("v_mfma_f32_32x32x16_bf16 v[64:79], v[12:15], v[20:23], v[64:79]")
    a("v_mfma_f32_32x32x16_bf16 v[80:95], v[8:11], v[24:27], v[80:95]")
    a("v_mfma_f32_32x32x16_bf16 v[80:95], v[12:15], v[28:31], v[80:95]")
    a("s_sub_u32 s25, s25, 1")
    a("s_cmp_lg_u32 s25, 0")
    a("s_cbranch_scc1 L_conv_loop1")
    a("s_mov_b32 s25, 16")
    a("L_conv_loop2:")
    a("ds_read_b128 v[8:11], v4 offset:0")
    a("ds_read_b128 v[12:15], v4 offset:32")
    a("ds_read_b128 v[24:27], v5 offset:2048")
    a("ds_read_b128 v[28:31], v5 offset:2080")
    a("v_subrev_u32 v4, 128, v4")
    a("v_subrev_u32 v5, 128, v5")
    a("s_waitcnt lgkmcnt(0)")
    a("v_mfma_f32_32x32x16_bf16 v[80:95], v[8:11], v[24:27], v[80:95]")
    a("v_mfma_f32_32x32x16_bf16 v[80:95], v[12:15], v[28:31], v[80:95]")
    a("s_sub_u32 s25, s25, 1")
    a("s_cmp_lg_u32 s25, 0")
    a("s_cbranch_scc1 L_conv_loop2")
    a("s_nop 15")
    a("s_lshl_b32 s24, s27, 1")
    a("s_xor_b32 s29, s28, 1")
    a("s_add_u32 s29, s24, s29")
    a("s_lshl_b32 s29, s29, 12")
    a(f"s_add_u32 s29, s29, {RBASE}")
    a("v_lshl_add_u32 v6, v1, 2, s29")
    a("s_add_u32 s29, s24, s28")
    a("s_lshl_b32 s29, s29, 12")
    a(f"s_add_u32 s29, s29, {RBASE}")
    a("v_lshl_add_u32 v7, v1, 2, s29")
    a("s_cmp_eq_u32 s28, 0")
    a("s_cbranch_scc1 L_conv_h0w")
    for r in range(16):
        a(f"ds_write_b32 v6, v{64+r} offset:{256*r}")
        a(f"v_mov_b32 v{64+r}, v{80+r}")
    a("s_branch L_conv_wdone")
    a("L_conv_h0w:")
    for r in range(16):
        a(f"ds_write_b32 v6, v{80+r} offset:{256*r}")
    a("L_conv_wdone:")
    a("s_waitcnt lgkmcnt(0)")
    a("s_barrier")
    for r in range(16):
        a(f"ds_read_b32 v{8+r}, v7 offset:{256*r}")
    a("s_lshl_b32 s24, s28, 5")
    a("v_add_u32 v30, s24, v2")
    a("v_lshlrev_b32 v31, 6, v30")
    a("v_lshl_add_u32 v31, v3, 3, v31")
    a(f"s_mul_i32 s29, s27, {UCH}")
    a(f"s_add_u32 s29, s29, {UBASE + 2048}")
    a("v_add_u32 v31, s29, v31")
    for rq in range(4):
        a(f"ds_read_b64 v[{40+2*rq}:{41+2*rq}], v31 offset:{16*rq}")
    a("s_lshl_b32 s24, s2, 1")
    a("s_add_u32 s24, s24, s27")
    a("s_lshl_b32 s29, s24, 1")
    a("v_mov_b32 v32, s29")
    a("buffer_load_ushort v33, v32, s[16:19], 0 offen")
    a("v_lshlrev_b32 v34, 5, v30")
    a("v_lshl_add_u32 v34, v3, 2, v34")
    a("v_lshlrev_b32 v34, 10, v34")
    a("v_add_u32 v34, s29, v34")
    a(f"v_add_u32 v34, {Z}, v34")
    a("s_waitcnt vmcnt(0) lgkmcnt(0)")
    a("v_lshlrev_b32 v33, 16, v33")
    for r in range(16):
        rq, rr = r // 4, r % 4
        a(f"v_add_f32 v35, v{64+r}, v{8+r}")
        a("v_cvt_pk_bf16_f32 v36, v35, v35")
        a("v_lshlrev_b32 v35, 16, v36")
        if rr % 2 == 0:
            a(f"v_lshlrev_b32 v37, 16, v{40+2*rq+rr//2}")
        else:
            a(f"v_and_b32 v37, 0xffff0000, v{40+2*rq+rr//2}")
        a("v_mul_f32 v37, v37, v33")
        a("v_cvt_pk_bf16_f32 v36, v37, v37")
        a("v_lshlrev_b32 v37, 16, v36")
        a("v_add_f32 v35, v35, v37")
        a(f"v_cvt_pk_bf16_f32 v{48+r}, v35, v35")
    for r in range(16):
        rq, rr = r // 4, r % 4
        row = 8*rq + rr
        if row < 4:
            a(f"buffer_store_short v{48+r}, v34, s[20:23], 0 offen offset:{1024*row}")
        else:
            a(f"v_add_u32 v35, {1024*row}, v34")
            a(f"buffer_store_short v{48+r}, v35, s[20:23], 0 offen")
    a("s_waitcnt vmcnt(0)")
    a("L_conv_done:")
    a("s_endpgm")
```

```python
from common import *
from k_prep import rnd2, unpack8

FFN1_LDS = 131072

def row_reduce(a, v):
    for sh in (8, 4, 2, 1):
        a("s_nop 1")
        a(f"v_add_f32_dpp v{v}, v{v}, v{v} row_ror:{sh} row_mask:0xf bank_mask:0xf")

def layernorm(a, src, dst, tmp):
    s1, s2 = tmp, tmp + 1
    a(f"v_mov_b32 v{s1}, 0")
    a(f"v_mov_b32 v{s2}, 0")
    for i in range(32):
        a(f"v_add_f32 v{s1}, v{s1}, v{src+i}")
        a(f"v_fmac_f32 v{s2}, v{src+i}, v{src+i}")
    row_reduce(a, s1)
    row_reduce(a, s2)
    a(f"v_mul_f32 v{s1}, 0x3b000000, v{s1}")
    a(f"v_mul_f32 v{s2}, 0x3b000000, v{s2}")
    a(f"v_fma_f32 v{s2}, -v{s1}, v{s1}, v{s2}")
    a(f"v_max_f32 v{s2}, 0, v{s2}")
    rnd2(a, s1, s2, tmp + 2)
    a(f"v_add_f32 v{s2}, 0x3727c5ac, v{s2}")
    rnd2(a, s2, s2, tmp + 2)
    a(f"v_sqrt_f32 v{s2}, v{s2}")
    a("s_nop 0")
    rnd2(a, s2, s2, tmp + 2)
    a(f"v_rcp_f32 v{s2}, v{s2}")
    a("s_nop 0")
    for i in range(0, 32, 2):
        a(f"v_sub_f32 v{dst+i}, v{src+i}, v{s1}")
        a(f"v_sub_f32 v{dst+i+1}, v{src+i+1}, v{s1}")
        rnd2(a, dst+i, dst+i+1, tmp + 2)
        a(f"v_mul_f32 v{dst+i}, v{dst+i}, v{s2}")
        a(f"v_mul_f32 v{dst+i+1}, v{dst+i+1}, v{s2}")
        rnd2(a, dst+i, dst+i+1, tmp + 2)

def gen_ffn1(a, name, layer):
    a(f"{name}:")
    a("s_cmp_ge_u32 s2, 240")
    a(f"s_cbranch_scc1 L_{name}_done")
    a("s_load_dwordx2 s[4:5], s[0:1], 0")
    a("s_load_dwordx2 s[8:9], s[0:1], 96")
    a("s_mov_b32 s24, 0x11111112")
    a("s_mul_hi_u32 s25, s2, s24")
    a("s_mul_i32 s26, s25, 15")
    a("s_sub_u32 s26, s2, s26")
    a("s_waitcnt lgkmcnt(0)")
    srd(a, 20, 8, 9, WS_BYTES)
    if layer == 1:
        srd(a, 12, 4, 5, 0x200000)
        xoff = 0
    else:
        srd(a, 12, 8, 9, WS_BYTES)
        xoff = X2
    xout = X1 if layer == 1 else X3
    a("v_lshrrev_b32 v1, 6, v0")
    a("s_nop 0")
    a("v_readfirstlane_b32 s27, v1")
    a("v_and_b32 v1, 63, v0")
    a("s_lshl_b32 s28, s26, 2")
    a("s_add_u32 s28, s28, s27")
    a("s_mul_i32 s28, s28, 49152")
    a(f"s_add_u32 s28, s28, {WP1}")
    a("v_lshl_add_u32 v2, v1, 4, s28")
    for ks in range(4):
        for f in range(3):
            r = 208 + (ks*3+f)*4
            a(f"buffer_load_dwordx4 v[{r}:{r+3}], v2, s[20:23], 0 offen offset:{(ks*3+f)*1024 if (ks*3+f) < 4 else 0}" if (ks*3+f) < 4 else
              f"buffer_load_dwordx4 v[{r}:{r+3}], v3, s[20:23], 0 offen offset:{(ks*3+f-4)*1024 if (ks*3+f) < 8 else 0}" if (ks*3+f) < 8 else
              f"buffer_load_dwordx4 v[{r}:{r+3}], v4, s[20:23], 0 offen offset:{(ks*3+f-8)*1024}")
            if ks*3+f == 0:
                a("v_add_u32 v3, 4096, v2")
                a("v_add_u32 v4, 8192, v2")
    a("v_add_u32 v2, 12288, v2")
    a("v_lshrrev_b32 v5, 4, v1")
    a("v_and_b32 v6, 15, v1")
    a("s_lshl_b32 s29, s25, 7")
    a("s_lshl_b32 s30, s27, 2")
    a("s_add_u32 s29, s29, s30")
    a("v_add_u32 v7, s29, v5")
    a("v_lshlrev_b32 v7, 10, v7")
    a("v_lshl_add_u32 v7, v6, 4, v7")
    a(f"v_add_u32 v8, {xoff}, v7")
    a(f"v_add_u32 v9, {Z}, v7")
    a(f"v_add_u32 v10, {xout}, v7")
    a("v_lshrrev_b32 v11, 2, v6")
    a("v_lshlrev_b32 v11, 6, v11")
    a("v_and_b32 v12, 3, v6")
    a("v_lshl_add_u32 v11, v12, 4, v11")
    a("v_add_u32 v11, v5, v11")
    a("v_add_u32 v11, s30, v11")
    a("v_lshlrev_b32 v11, 4, v11")
    a("s_mov_b32 s31, 8")
    a(f"L_{name}_pro:")
    for q in range(4):
        a(f"buffer_load_dwordx4 v[{16+4*q}:{19+4*q}], v8, s[12:15], 0 offen offset:{256*q}")
    for q in range(4):
        a(f"buffer_load_dwordx4 v[{32+4*q}:{35+4*q}], v9, s[20:23], 0 offen offset:{256*q}")
    a("s_waitcnt vmcnt(0)")
    for q in range(4):
        unpack8(a, 16+4*q, 64+8*q)
        unpack8(a, 32+4*q, 96+8*q)
    layernorm(a, 64, 128, 60)
    for i in range(0, 32, 2):
        a(f"v_mul_f32 v{128+i}, v{128+i}, v{96+i}")
        a(f"v_mul_f32 v{129+i}, v{129+i}, v{97+i}")
        rnd2(a, 128+i, 129+i, 62)
        a(f"v_add_f32 v{64+i}, v{64+i}, v{128+i}")
        a(f"v_add_f32 v{65+i}, v{65+i}, v{129+i}")
        a(f"v_cvt_pk_bf16_f32 v{16+i//2}, v{64+i}, v{65+i}")
        a(f"v_lshlrev_b32 v{64+i}, 16, v{16+i//2}")
        a(f"v_and_b32 v{65+i}, 0xffff0000, v{16+i//2}")
    a("s_cmp_lg_u32 s26, 0")
    lab = a.label("nox1")
    a(f"s_cbranch_scc1 {lab}")
    for q in range(4):
        a(f"buffer_store_dwordx4 v[{16+4*q}:{19+4*q}], v10, s[20:23], 0 offen offset:{256*q}")
    a(f"{lab}:")
    layernorm(a, 64, 128, 60)
    for i in range(0, 32, 2):
        a(f"v_cvt_pk_bf16_f32 v{32+i//2}, v{128+i}, v{129+i}")
    for q in range(4):
        a(f"ds_write_b128 v11, v[{32+4*q}:{35+4*q}] offset:{q*4*1024}")
    a("v_add_u32 v8, 0x4000, v8")
    a("v_add_u32 v9, 0x4000, v9")
    a("v_add_u32 v10, 0x4000, v10")
    a("v_add_u32 v11, 0x4000, v11")
    a("s_sub_u32 s31, s31, 1")
    a("s_cmp_lg_u32 s31, 0")
    a(f"s_cbranch_scc1 L_{name}_pro")
    a("s_waitcnt lgkmcnt(0)")
    a("s_barrier")
    for r in range(96):
        a(f"v_mov_b32 v{64+r}, 0")
    a("v_lshlrev_b32 v5, 4, v1")
    a("v_add_u32 v14, 0x10000, v5")
    a("s_mov_b32 s31, 4")
    a(f"L_{name}_main:")
    for kq in range(4):
        for mt in range(8):
            a(f"ds_read_b128 v[{160+4*mt}:{163+4*mt}], v{5 if mt < 4 else 14} offset:{((mt%4)*16+kq)*1024}")
        a("s_waitcnt vmcnt(9) lgkmcnt(0)")
        for f in range(3):
            b = 208 + (kq*3+f)*4
            for mt in range(8):
                acc = 64 + (f*8+mt)*4
                a(f"v_mfma_f32_16x16x32_bf16 v[{acc}:{acc+3}], v[{b}:{b+3}], v[{160+4*mt}:{163+4*mt}], v[{acc}:{acc+3}]")
        for f in range(3):
            b = 208 + (kq*3+f)*4
            a(f"buffer_load_dwordx4 v[{b}:{b+3}], v2, s[20:23], 0 offen offset:{f*1024}")
        a("v_add_u32 v2, 3072, v2")
    a("v_add_u32 v5, 4096, v5")
    a("v_add_u32 v14, 4096, v14")
    a("s_sub_u32 s31, s31, 1")
    a("s_cmp_lg_u32 s31, 0")
    a(f"s_cbranch_scc1 L_{name}_main")
    a("s_nop 7")
    a("s_waitcnt vmcnt(0)")
    a("s_mul_i32 s28, s26, 96")
    a("s_mul_i32 s29, s27, 24")
    a("s_add_u32 s28, s28, s29")
    a("v_and_b32 v6, 15, v1")
    a("v_lshrrev_b32 v7, 4, v1")
    a("v_lshl_add_u32 v8, v7, 2, s28")
    a("v_add_u32 v9, 16, v8")
    def hp_addr(vf, vd):
        a(f"v_lshrrev_b32 v10, 4, v{vf}")
        a("v_lshlrev_b32 v10, 6, v10")
        a(f"v_bfe_u32 v11, v{vf}, 3, 1")
        a("v_lshl_add_u32 v10, v11, 5, v10")
        a("v_add_u32 v10, v10, v6")
        a("v_lshlrev_b32 v10, 4, v10")
        a(f"v_and_b32 v11, 4, v{vf}")
        a(f"v_lshl_add_u32 v{vd}, v11, 1, v10")
        a("s_lshl_b32 s29, s25, 2")
        a("s_mul_i32 s29, s29, 88064")
        a(f"s_add_u32 s29, s29, {HP}")
        a(f"v_add_u32 v{vd}, s29, v{vd}")
        a("v_bfrev_b32 v11, 1")
        a(f"v_cmp_gt_u32 vcc, 1376, v{vf}")
        a("s_nop 1")
        a(f"v_cndmask_b32 v{vd}, v11, v{vd}, vcc")
    hp_addr(8, 12)
    hp_addr(9, 13)
    a("v_cmp_gt_u32 vcc, 2, v7")
    a("v_bfrev_b32 v11, 1")
    a("s_nop 0")
    a("v_cndmask_b32 v13, v11, v13, vcc")
    def silu_mul(g, u, out):
        for r in range(0, 4, 2):
            rnd2(a, g+r, g+r+1, 16)
            rnd2(a, u+r, u+r+1, 16)
        for r in range(4):
            a(f"v_mul_f32 v17, 0xbfb8aa3b, v{g+r}")
            a("v_exp_f32 v17, v17")
            a("s_nop 0")
            a("v_add_f32 v17, 1.0, v17")
            a("v_rcp_f32 v17, v17")
            a("s_nop 0")
            a(f"v_mul_f32 v{g+r}, v{g+r}, v17")
        for r in range(0, 4, 2):
            rnd2(a, g+r, g+r+1, 16)
        for r in range(4):
            a(f"v_mul_f32 v{g+r}, v{g+r}, v{u+r}")
        a(f"v_cvt_pk_bf16_f32 v{out}, v{g}, v{g+1}")
        a(f"v_cvt_pk_bf16_f32 v{out+1}, v{g+2}, v{g+3}")
    for mt in range(8):
        g = 64 + (0*8+mt)*4
        u = 64 + (1*8+mt)*4
        silu_mul(g, u, 20)
        off = (mt//2) * 88064 + (mt & 1) * 256
        a(f"v_add_u32 v22, {off}, v12")
        a("buffer_store_dwordx2 v[20:21], v22, s[20:23], 0 offen")
        m = 64 + (2*8+mt)*4
        for r in range(4):
            a(f"v_mov_b32 v{24+r}, v{m+r}")
        a("s_nop 1")
        for r in range(4):
            a(f"v_permlane32_swap_b32 v{m+r}, v{24+r}")
        a("s_nop 1")
        silu_mul(m, 24, 20)
        a(f"v_add_u32 v22, {off}, v13")
        a("buffer_store_dwordx2 v[20:21], v22, s[20:23], 0 offen")
        a("s_nop 1")
    a("s_waitcnt vmcnt(0)")
    a(f"L_{name}_done:")
    a("s_endpgm")
```

```python
from common import *

FFN2_LDS = 65536

def gen_ffn2(a, name, layer):
    a(f"{name}:")
    a("s_cmp_ge_u32 s2, 256")
    a(f"s_cbranch_scc1 L_{name}_done")
    a("s_load_dwordx2 s[4:5], s[0:1], 80")
    a("s_load_dwordx2 s[8:9], s[0:1], 96")
    a("s_lshr_b32 s25, s2, 3")
    a("s_and_b32 s26, s2, 7")
    a("s_waitcnt lgkmcnt(0)")
    srd(a, 20, 8, 9, WS_BYTES)
    if layer == 1:
        srd(a, 12, 8, 9, WS_BYTES)
        ooff, xres = X2, X1
    else:
        srd(a, 12, 4, 5, 0x200000)
        ooff, xres = 0, X3
    a("v_lshrrev_b32 v1, 6, v0")
    a("s_nop 0")
    a("v_readfirstlane_b32 s27, v1")
    a("v_and_b32 v1, 63, v0")
    a("s_nop 2")
    a("s_mul_i32 s28, s27, 22")
    a("s_cmp_eq_u32 s27, 3")
    a("s_cselect_b32 s29, 1, 0")
    a("s_sub_u32 s28, s28, s29")
    a("s_cmp_ge_u32 s27, 2")
    a("s_cselect_b32 s29, 21, 22")
    a("s_lshl_b32 s30, s25, 1")
    a("s_mul_i32 s30, s30, 86")
    a("s_add_u32 s30, s30, s28")
    a("s_lshl_b32 s30, s30, 10")
    a(f"s_add_u32 s30, s30, {HP}")
    a("v_lshl_add_u32 v2, v1, 4, s30")
    a("v_add_u32 v3, 88064, v2")
    a("s_lshl_b32 s30, s26, 1")
    a("s_mul_i32 s30, s30, 86")
    a("s_add_u32 s30, s30, s28")
    a("s_lshl_b32 s30, s30, 10")
    a(f"s_add_u32 s30, s30, {WP2}")
    a("v_lshl_add_u32 v4, v1, 4, s30")
    a("v_add_u32 v5, 88064, v4")
    for r in range(64):
        a(f"v_mov_b32 v{64+r}, 0")
    a(f"L_{name}_loop:")
    a("buffer_load_dwordx4 v[16:19], v2, s[20:23], 0 offen")
    a("buffer_load_dwordx4 v[20:23], v3, s[20:23], 0 offen")
    a("buffer_load_dwordx4 v[24:27], v4, s[20:23], 0 offen")
    a("buffer_load_dwordx4 v[28:31], v5, s[20:23], 0 offen")
    a("v_add_u32 v2, 1024, v2")
    a("v_add_u32 v3, 1024, v3")
    a("v_add_u32 v4, 1024, v4")
    a("v_add_u32 v5, 1024, v5")
    a("s_waitcnt vmcnt(0)")
    for dt in range(2):
        for tt in range(2):
            acc = 64 + (dt*2+tt)*16
            a(f"v_mfma_f32_32x32x16_bf16 v[{acc}:{acc+15}], v[{24+4*dt}:{27+4*dt}], v[{16+4*tt}:{19+4*tt}], v[{acc}:{acc+15}]")
    a("s_sub_u32 s29, s29, 1")
    a("s_cmp_lg_u32 s29, 0")
    a(f"s_cbranch_scc1 L_{name}_loop")
    a("s_nop 15")
    a("s_lshl_b32 s30, s27, 14")
    a("v_lshl_add_u32 v6, v1, 2, s30")
    for r in range(64):
        a(f"ds_write_b32 v6, v{64+r} offset:{256*r}")
    a("s_waitcnt lgkmcnt(0)")
    a("s_barrier")
    a("s_lshl_b32 s30, s27, 12")
    a("v_lshl_add_u32 v6, v1, 2, s30")
    for w in range(4):
        for r in range(16):
            a(f"ds_read_b32 v{64+16*w+r}, v6 offset:{16384*w + 256*r}")
    a("s_and_b32 s30, s27, 1")
    a("s_lshl_b32 s30, s30, 5")
    a("s_lshl_b32 s31, s25, 6")
    a("s_add_u32 s30, s30, s31")
    a("v_and_b32 v7, 31, v1")
    a("v_add_u32 v7, s30, v7")
    a("v_lshlrev_b32 v7, 10, v7")
    a("s_lshr_b32 s30, s27, 1")
    a("s_lshl_b32 s30, s30, 5")
    a("s_lshl_b32 s31, s26, 6")
    a("s_add_u32 s30, s30, s31")
    a("v_lshrrev_b32 v8, 5, v1")
    a("v_lshl_add_u32 v8, v8, 2, s30")
    a("v_lshl_add_u32 v7, v8, 1, v7")
    a(f"v_add_u32 v9, {xres}, v7")
    a(f"v_add_u32 v10, {ooff}, v7")
    for rq in range(4):
        a(f"buffer_load_dwordx2 v[{16+2*rq}:{17+2*rq}], v9, s[20:23], 0 offen offset:{16*rq}")
    a("s_waitcnt vmcnt(0) lgkmcnt(0)")
    for rq in range(4):
        for rr in range(4):
            r = 4*rq + rr
            a(f"v_add_f32 v{64+r}, v{64+r}, v{80+r}")
            a(f"v_add_f32 v{96+r}, v{96+r}, v{112+r}")
            a(f"v_add_f32 v{64+r}, v{64+r}, v{96+r}")
            a(f"v_cvt_pk_bf16_f32 v30, v{64+r}, v{64+r}")
            a(f"v_lshlrev_b32 v{64+r}, 16, v30")
            if rr % 2 == 0:
                a(f"v_lshlrev_b32 v31, 16, v{16+2*rq+rr//2}")
            else:
                a(f"v_and_b32 v31, 0xffff0000, v{16+2*rq+rr//2}")
            a(f"v_add_f32 v{64+r}, v{64+r}, v31")
        a(f"v_cvt_pk_bf16_f32 v{32+2*rq}, v{64+4*rq}, v{65+4*rq}")
        a(f"v_cvt_pk_bf16_f32 v{33+2*rq}, v{66+4*rq}, v{67+4*rq}")
        a(f"buffer_store_dwordx2 v[{32+2*rq}:{33+2*rq}], v10, s[12:15], 0 offen offset:{16*rq}")
    a("s_waitcnt vmcnt(0)")
    a(f"L_{name}_done:")
    a("s_endpgm")
```

```python
from common import *

def rnd2(a, x, y, tmp):
    a(f"v_cvt_pk_bf16_f32 v{tmp}, v{x}, v{y}")
    a(f"v_lshlrev_b32 v{x}, 16, v{tmp}")
    a(f"v_and_b32 v{y}, 0xffff0000, v{tmp}")

def unpack8(a, src, dst):
    for i in range(4):
        a(f"v_lshlrev_b32 v{dst+2*i}, 16, v{src+i}")
        a(f"v_and_b32 v{dst+2*i+1}, 0xffff0000, v{src+i}")

def gen_prep(a):
    a("prep_kernel:")
    a("s_load_dwordx2 s[4:5], s[0:1], 8")
    a("s_load_dwordx2 s[6:7], s[0:1], 16")
    a("s_load_dwordx2 s[8:9], s[0:1], 24")
    a("s_load_dwordx2 s[10:11], s[0:1], 96")
    a("s_load_dwordx2 s[12:13], s[0:1], 56")
    a("s_load_dwordx2 s[14:15], s[0:1], 64")
    a("s_load_dwordx2 s[16:17], s[0:1], 72")
    a("s_waitcnt lgkmcnt(0)")
    srd(a, 20, 4, 5, 0x200000)
    srd(a, 24, 6, 7, 0x200000)
    srd(a, 28, 8, 9, 4096)
    srd(a, 32, 10, 11, WS_BYTES)
    srd(a, 36, 12, 13, 512*1376*2)
    srd(a, 40, 14, 15, 512*1376*2)
    srd(a, 44, 16, 17, 512*1376*2)
    a("s_cmp_ge_u32 s2, 256")
    a("s_cbranch_scc1 L_prep_partB")
    a("s_lshr_b32 s50, s2, 3")
    a("s_and_b32 s51, s2, 7")
    a("v_and_b32 v1, 7, v0")
    a("v_lshrrev_b32 v2, 3, v0")
    a("s_lshl_b32 s52, s51, 6")
    a("v_lshlrev_b32 v3, 3, v1")
    a("v_add_u32 v3, s52, v3")
    a("v_lshlrev_b32 v4, 3, v3")
    for i in range(4):
        a(f"buffer_load_dwordx4 v[{16+4*i}:{19+4*i}], v4, s[28:31], 0 offen offset:{16*i}")
    a("s_lshl_b32 s53, s50, 6")
    a("v_add_u32 v5, s53, v2")
    a("v_lshlrev_b32 v6, 10, v5")
    a("v_lshl_add_u32 v6, v3, 1, v6")
    a("v_subrev_u32 v7, 3072, v6")
    a("v_mul_u32_u24 v8, 1152, v1")
    a("v_lshl_add_u32 v8, v2, 1, v8")
    for it in range(2):
        off = it * 32 * 1024
        for i in range(4):
            a(f"buffer_load_dwordx4 v[{32+4*i}:{35+4*i}], v7, s[20:23], 0 offen offset:{off + 1024*i}" if off + 1024*i < 4096 else
              f"buffer_load_dwordx4 v[{32+4*i}:{35+4*i}], v9, s[20:23], 0 offen offset:{1024*i}")
        if it == 0:
            a("buffer_load_dwordx4 v[48:51], v6, s[24:27], 0 offen")
            a("v_add_u32 v9, 0x8000, v7")
            a("v_add_u32 v10, 0x8000, v6")
        else:
            a("buffer_load_dwordx4 v[48:51], v10, s[24:27], 0 offen")
        a("s_waitcnt vmcnt(0)")
        for i in range(4):
            unpack8(a, 32+4*i, 64+8*i)
        unpack8(a, 48, 96)
        for e in range(8):
            a(f"v_lshlrev_b32 v110, 16, v{16+2*e}")
            a(f"v_and_b32 v111, 0xffff0000, v{16+2*e}")
            a(f"v_lshlrev_b32 v112, 16, v{17+2*e}")
            a(f"v_and_b32 v113, 0xffff0000, v{17+2*e}")
            a(f"v_mul_f32 v114, v{64+e}, v113")
            a(f"v_mul_f32 v115, v{72+e}, v112")
            rnd2(a, 114, 115, 116)
            a("v_add_f32 v114, v114, v115")
            a(f"v_mul_f32 v115, v{80+e}, v111")
            rnd2(a, 114, 115, 116)
            a("v_add_f32 v114, v114, v115")
            a(f"v_mul_f32 v115, v{88+e}, v110")
            rnd2(a, 114, 115, 116)
            a("v_add_f32 v114, v114, v115")
            rnd2(a, 114, 115, 116)
            a(f"v_mul_f32 v114, v114, v{96+e}")
            a("v_cvt_pk_bf16_f32 v116, v114, v114")
            a(f"ds_write_b16 v8, v116 offset:{144*e + 64*it}")
    a("s_waitcnt lgkmcnt(0)")
    a("s_barrier")
    for i in range(2):
        a(f"v_add_u32 v5, {256*i}, v0")
        a("v_lshrrev_b32 v6, 3, v5")
        a("v_and_b32 v7, 7, v5")
        a("v_mul_u32_u24 v8, 144, v6")
        a("v_lshl_add_u32 v8, v7, 4, v8")
        a(f"ds_read_b128 v[16:19], v8")
        a("v_add_u32 v6, s52, v6")
        a("v_lshlrev_b32 v6, 12, v6")
        a("v_lshl_add_u32 v6, v7, 4, v6")
        a("s_lshl_b32 s54, s53, 1")
        a("v_add_u32 v6, s54, v6")
        a("s_waitcnt lgkmcnt(0)")
        a(f"buffer_store_dwordx4 v[16:19], v6, s[32:35], 0 offen offset:0")
        a("s_waitcnt vmcnt(0)")
    a("s_endpgm")
    a("L_prep_partB:")
    a("s_sub_u32 s50, s2, 256")
    a("s_lshl_b32 s50, s50, 2")
    a("v_lshrrev_b32 v1, 6, v0")
    a("s_nop 0")
    a("v_readfirstlane_b32 s51, v1")
    a("s_nop 3")
    a("s_add_u32 s50, s50, s51")
    a("v_and_b32 v1, 63, v0")
    a("s_cmp_ge_u32 s50, 2880")
    a("s_cbranch_scc1 L_prep_partB2")
    a("s_mov_b32 s52, 0x55555556")
    a("s_mul_hi_u32 s53, s50, s52")
    a("s_mul_i32 s54, s53, 3")
    a("s_sub_u32 s54, s50, s54")
    a("s_and_b32 s55, s53, 15")
    a("s_lshr_b32 s56, s53, 4")
    a("s_mul_i32 s57, s56, 24")
    a("v_and_b32 v2, 15, v1")
    a("v_lshrrev_b32 v3, 4, v1")
    a("v_add_u32 v4, s57, v2")
    a("v_mov_b32 v5, 0")
    a("s_cmp_eq_u32 s54, 1")
    a("s_cbranch_scc0 L_prep_f_not1")
    a("v_mov_b32 v5, 1")
    a("L_prep_f_not1:")
    a("s_cmp_eq_u32 s54, 2")
    a("s_cbranch_scc0 L_prep_f_not2")
    a("v_and_b32 v6, 7, v2")
    a("v_add_u32 v4, s57, v6")
    a("v_add_u32 v4, 16, v4")
    a("v_lshrrev_b32 v5, 3, v2")
    a("L_prep_f_not2:")
    a("s_lshl_b32 s58, s55, 5")
    a("v_lshl_add_u32 v6, v3, 3, s58")
    a("s_movk_i32 s59, 2752")
    a("v_mul_lo_u32 v6, v6, s59")
    a("v_lshl_add_u32 v6, v4, 1, v6")
    a("v_bfrev_b32 v7, 1")
    a("v_cmp_gt_u32 vcc, 1376, v4")
    a("s_nop 1")
    a("v_cndmask_b32 v6, v7, v6, vcc")
    for r in range(4):
        a(f"v_mov_b32 v{16+r}, 0")
    for p, sr in ((0, 36), (1, 40)):
        a(f"v_cmp_eq_u32 vcc, {p}, v5")
        a("s_and_saveexec_b64 s[60:61], vcc")
        lab = a.label("skip")
        a(f"s_cbranch_execz {lab}")
        for e in range(8):
            a(f"v_add_u32 v8, {2752*e}, v6")
            a(f"buffer_load_ushort v{24+e}, v8, s[{sr}:{sr+3}], 0 offen")
        a("s_waitcnt vmcnt(0)")
        for r in range(4):
            a(f"v_lshl_or_b32 v{16+r}, v{25+2*r}, 16, v{24+2*r}")
        a(f"{lab}:")
        a("s_mov_b64 exec, s[60:61]")
    a("s_lshl_b32 s58, s50, 10")
    a("v_lshl_add_u32 v6, v1, 4, s58")
    a(f"buffer_store_dwordx4 v[16:19], v6, s[32:35], 0 offen offset:0" if False else
      f"v_add_u32 v6, {WP1}, v6")
    a("buffer_store_dwordx4 v[16:19], v6, s[32:35], 0 offen")
    a("s_waitcnt vmcnt(0)")
    a("s_endpgm")
    a("L_prep_partB2:")
    a("s_sub_u32 s50, s50, 2880")
    a("s_cmp_ge_u32 s50, 1376")
    a("s_cbranch_scc1 L_prep_done")
    a("s_mov_b32 s52, 0x2FA0BEA")
    a("s_mul_hi_u32 s53, s50, s52")
    a("s_mul_i32 s54, s53, 86")
    a("s_sub_u32 s54, s50, s54")
    a("v_and_b32 v2, 31, v1")
    a("v_lshrrev_b32 v3, 5, v1")
    a("s_lshl_b32 s55, s54, 4")
    a("v_lshl_add_u32 v6, v3, 3, s55")
    a("v_lshlrev_b32 v6, 10, v6")
    a("s_lshl_b32 s56, s53, 5")
    a("v_add_u32 v2, s56, v2")
    a("v_lshl_add_u32 v6, v2, 1, v6")
    for r in range(4):
        a(f"v_mov_b32 v{16+r}, 0")
    for e in range(8):
        if e < 4:
            a(f"buffer_load_ushort v{24+e}, v6, s[44:47], 0 offen offset:{1024*e}")
        else:
            if e == 4:
                a("v_add_u32 v7, 4096, v6")
            a(f"buffer_load_ushort v{24+e}, v7, s[44:47], 0 offen offset:{1024*(e-4)}")
    a("s_lshl_b32 s58, s50, 10")
    a("v_lshl_add_u32 v6, v1, 4, s58")
    a(f"v_add_u32 v6, {WP2}, v6")
    a("s_waitcnt vmcnt(0)")
    for r in range(4):
        a(f"v_lshl_or_b32 v{16+r}, v{25+2*r}, 16, v{24+2*r}")
    a("buffer_store_dwordx4 v[16:19], v6, s[32:35], 0 offen")
    a("s_waitcnt vmcnt(0)")
    a("L_prep_done:")
    a("s_endpgm")
```

```python
import sys
from common import *
from k_prep import gen_prep
from k_conv import gen_conv, CONV_LDS
from k_ffn1 import gen_ffn1, FFN1_LDS
from k_ffn2 import gen_ffn2, FFN2_LDS

NAME = "interleave_layers__ssm_conv_h3__swiglu_ffn__prompt"
hdr = open(f"cdna_kernels/{NAME}.s.ref").read().split("; Override launch")[0]
launch = f"""; @launch kernel=prep_kernel grid=(1320,1,1) block=(256,1,1) lds=9216
; @launch kernel=conv_kernel grid=(256,1,1) block=(256,1,1) lds={CONV_LDS}
; @launch kernel=ffn1a_kernel grid=(240,1,1) block=(256,1,1) lds={FFN1_LDS}
; @launch kernel=ffn2a_kernel grid=(256,1,1) block=(256,1,1) lds={FFN2_LDS}
; @launch kernel=ffn1b_kernel grid=(240,1,1) block=(256,1,1) lds={FFN1_LDS}
; @launch kernel=ffn2b_kernel grid=(256,1,1) block=(256,1,1) lds={FFN2_LDS}
"""
out = hdr + launch + '.amdgcn_target "amdgcn-amd-amdhsa--gfx950"\n.text\n'
kernels = []
def add(name, fn, vgpr):
    global out
    a = Asm()
    a.uid = len(kernels) * 1000
    fn(a)
    out += f".globl {name}\n.p2align 8\n.type {name},@function\n" + a.text()
    kernels.append((name, vgpr))
add("prep_kernel", gen_prep, 128)
add("conv_kernel", gen_conv, 128)
add("ffn1a_kernel", lambda a: gen_ffn1(a, "ffn1a_kernel", 1), 256)
add("ffn2a_kernel", lambda a: gen_ffn2(a, "ffn2a_kernel", 1), 128)
add("ffn1b_kernel", lambda a: gen_ffn1(a, "ffn1b_kernel", 2), 256)
add("ffn2b_kernel", lambda a: gen_ffn2(a, "ffn2b_kernel", 2), 128)
out += '.section .rodata,"a"\n'
for name, vgpr in kernels:
    out += ".p2align 6\n" + kernel_desc(name, vgpr)
open(f"cdna_kernels/{NAME}.s", "w").write(out)
print("written", len(out))
```

```python
from common import *
from k_prep import rnd2, unpack8

FFN1_LDS = 131072

def row_reduce(a, v):
    for sh in (8, 4, 2, 1):
        a("s_nop 1")
        a(f"v_add_f32_dpp v{v}, v{v}, v{v} row_ror:{sh} row_mask:0xf bank_mask:0xf")

def layernorm(a, src, dst, tmp):
    s1, s2 = tmp, tmp + 1
    a(f"v_mov_b32 v{s1}, 0")
    a(f"v_mov_b32 v{s2}, 0")
    for i in range(32):
        a(f"v_add_f32 v{s1}, v{s1}, v{src+i}")
        a(f"v_fmac_f32 v{s2}, v{src+i}, v{src+i}")
    row_reduce(a, s1)
    row_reduce(a, s2)
    a(f"v_mul_f32 v{s1}, 0x3b000000, v{s1}")
    a(f"v_mul_f32 v{s2}, 0x3b000000, v{s2}")
    a(f"v_fma_f32 v{s2}, -v{s1}, v{s1}, v{s2}")
    a(f"v_max_f32 v{s2}, 0, v{s2}")
    rnd2(a, s1, s2, tmp + 2)
    a(f"v_add_f32 v{s2}, 0x3727c5ac, v{s2}")
    rnd2(a, s2, s2, tmp + 2)
    a(f"v_sqrt_f32 v{s2}, v{s2}")
    a("s_nop 0")
    rnd2(a, s2, s2, tmp + 2)
    a(f"v_rcp_f32 v{s2}, v{s2}")
    a("s_nop 0")
    for i in range(0, 32, 2):
        a(f"v_sub_f32 v{dst+i}, v{src+i}, v{s1}")
        a(f"v_sub_f32 v{dst+i+1}, v{src+i+1}, v{s1}")
        rnd2(a, dst+i, dst+i+1, tmp + 2)
        a(f"v_mul_f32 v{dst+i}, v{dst+i}, v{s2}")
        a(f"v_mul_f32 v{dst+i+1}, v{dst+i+1}, v{s2}")
        rnd2(a, dst+i, dst+i+1, tmp + 2)


AP = 0x1600000
def gen_ln(a, name, layer):
    a(f"{name}:")
    a("s_cmp_ge_u32 s2, 128")
    a(f"s_cbranch_scc1 L_{name}_done")
    a("s_load_dwordx2 s[4:5], s[0:1], 0")
    a("s_load_dwordx2 s[8:9], s[0:1], 96")
    a("s_waitcnt lgkmcnt(0)")
    srd(a, 20, 8, 9, WS_BYTES)
    if layer == 1:
        srd(a, 12, 4, 5, 0x200000)
        xoff = 0
    else:
        srd(a, 12, 8, 9, WS_BYTES)
        xoff = X2
    xout = X1 if layer == 1 else X3
    a("v_lshrrev_b32 v1, 6, v0")
    a("s_nop 0")
    a("v_readfirstlane_b32 s27, v1")
    a("v_and_b32 v1, 63, v0")
    a("v_lshrrev_b32 v5, 4, v1")
    a("v_and_b32 v6, 15, v1")
    a("s_lshl_b32 s29, s2, 4")
    a("s_lshl_b32 s30, s27, 2")
    a("s_add_u32 s29, s29, s30")
    a("v_add_u32 v7, s29, v5")
    a("v_lshlrev_b32 v7, 10, v7")
    a("v_lshl_add_u32 v7, v6, 4, v7")
    a(f"v_add_u32 v8, {xoff}, v7")
    a(f"v_add_u32 v9, {Z}, v7")
    a(f"v_add_u32 v10, {xout}, v7")
    a("v_lshrrev_b32 v11, 2, v6")
    a("v_lshlrev_b32 v11, 6, v11")
    a("v_and_b32 v12, 3, v6")
    a("v_lshl_add_u32 v11, v12, 4, v11")
    a("v_add_u32 v11, v5, v11")
    a("v_add_u32 v11, s30, v11")
    a("v_lshlrev_b32 v11, 4, v11")
    a("s_lshl_b32 s29, s2, 14")
    a(f"s_add_u32 s29, s29, {AP}")
    a("v_add_u32 v11, s29, v11")
    a("v_add_u32 v13, 4096, v11")
    for q in range(4):
        a(f"buffer_load_dwordx4 v[{16+4*q}:{19+4*q}], v8, s[12:15], 0 offen offset:{256*q}")
    for q in range(4):
        a(f"buffer_load_dwordx4 v[{32+4*q}:{35+4*q}], v9, s[20:23], 0 offen offset:{256*q}")
    a("s_waitcnt vmcnt(0)")
    for q in range(4):
        unpack8(a, 16+4*q, 64+8*q)
        unpack8(a, 32+4*q, 96+8*q)
    layernorm(a, 64, 128, 60)
    for i in range(0, 32, 2):
        a(f"v_mul_f32 v{128+i}, v{128+i}, v{96+i}")
        a(f"v_mul_f32 v{129+i}, v{129+i}, v{97+i}")
        rnd2(a, 128+i, 129+i, 62)
        a(f"v_add_f32 v{64+i}, v{64+i}, v{128+i}")
        a(f"v_add_f32 v{65+i}, v{65+i}, v{129+i}")
        a(f"v_cvt_pk_bf16_f32 v{16+i//2}, v{64+i}, v{65+i}")
        a(f"v_lshlrev_b32 v{64+i}, 16, v{16+i//2}")
        a(f"v_and_b32 v{65+i}, 0xffff0000, v{16+i//2}")
    for q in range(4):
        a(f"buffer_store_dwordx4 v[{16+4*q}:{19+4*q}], v10, s[20:23], 0 offen offset:{256*q}")
    layernorm(a, 64, 128, 60)
    for i in range(0, 32, 2):
        a(f"v_cvt_pk_bf16_f32 v{32+i//2}, v{128+i}, v{129+i}")
    for q in range(4):
        a(f"buffer_store_dwordx4 v[{32+4*q}:{35+4*q}], v{11 if q < 1 else 13}, s[20:23], 0 offen offset:{0 if q < 1 else 0}")
        if q >= 1 and q < 3:
            a("v_add_u32 v13, 4096, v13")
    a("s_waitcnt vmcnt(0)")
    a(f"L_{name}_done:")
    a("s_endpgm")

def gen_ffn1(a, name, layer):
    a(f"{name}:")
    a("s_cmp_ge_u32 s2, 240")
    a(f"s_cbranch_scc1 L_{name}_done")
    a("s_load_dwordx2 s[4:5], s[0:1], 0")
    a("s_load_dwordx2 s[8:9], s[0:1], 96")
    a("s_mov_b32 s24, 0x11111112")
    a("s_mul_hi_u32 s25, s2, s24")
    a("s_mul_i32 s26, s25, 15")
    a("s_sub_u32 s26, s2, s26")
    a("s_waitcnt lgkmcnt(0)")
    srd(a, 20, 8, 9, WS_BYTES)
    if layer == 1:
        srd(a, 12, 4, 5, 0x200000)
        xoff = 0
    else:
        srd(a, 12, 8, 9, WS_BYTES)
        xoff = X2
    xout = X1 if layer == 1 else X3
    a("v_lshrrev_b32 v1, 6, v0")
    a("s_nop 0")
    a("v_readfirstlane_b32 s27, v1")
    a("v_and_b32 v1, 63, v0")
    a("s_lshl_b32 s28, s26, 2")
    a("s_add_u32 s28, s28, s27")
    a("s_mul_i32 s28, s28, 49152")
    a(f"s_add_u32 s28, s28, {WP1}")
    a("v_lshl_add_u32 v2, v1, 4, s28")
    for ks in range(4):
        for f in range(3):
            r = 208 + (ks*3+f)*4
            a(f"buffer_load_dwordx4 v[{r}:{r+3}], v2, s[20:23], 0 offen offset:{(ks*3+f)*1024 if (ks*3+f) < 4 else 0}" if (ks*3+f) < 4 else
              f"buffer_load_dwordx4 v[{r}:{r+3}], v3, s[20:23], 0 offen offset:{(ks*3+f-4)*1024 if (ks*3+f) < 8 else 0}" if (ks*3+f) < 8 else
              f"buffer_load_dwordx4 v[{r}:{r+3}], v4, s[20:23], 0 offen offset:{(ks*3+f-8)*1024}")
            if ks*3+f == 0:
                a("v_add_u32 v3, 4096, v2")
                a("v_add_u32 v4, 8192, v2")
    a("v_add_u32 v2, 12288, v2")
    a("s_lshl_b32 s29, s25, 17")
    a("s_lshl_b32 s30, s27, 15")
    a("s_add_u32 s29, s29, s30")
    a(f"s_add_u32 s29, s29, {AP}")
    a("v_lshl_add_u32 v7, v1, 4, s29")
    for i in range(32):
        if i % 4 == 0:
            a(f"s_add_u32 s31, s30, {i*1024}")
            a("s_mov_b32 m0, s31")
            a("s_nop 0")
        a(f"buffer_load_dwordx4 v7, s[20:23], 0 offen offset:{(i%4)*1024} lds")
        if i % 4 == 3:
            a("v_add_u32 v7, 4096, v7")
    a("s_waitcnt vmcnt(0)")
    a("s_waitcnt lgkmcnt(0)")
    a("s_barrier")
    for r in range(96):
        a(f"v_mov_b32 v{64+r}, 0")
    a("v_lshlrev_b32 v5, 4, v1")
    a("v_add_u32 v14, 0x10000, v5")
    a("s_mov_b32 s31, 4")
    a(f"L_{name}_main:")
    for kq in range(4):
        for mt in range(8):
            a(f"ds_read_b128 v[{160+4*mt}:{163+4*mt}], v{5 if mt < 4 else 14} offset:{((mt%4)*16+kq)*1024}")
        a("s_waitcnt vmcnt(9) lgkmcnt(0)")
        for f in range(3):
            b = 208 + (kq*3+f)*4
            for mt in range(8):
                acc = 64 + (f*8+mt)*4
                a(f"v_mfma_f32_16x16x32_bf16 v[{acc}:{acc+3}], v[{b}:{b+3}], v[{160+4*mt}:{163+4*mt}], v[{acc}:{acc+3}]")
        for f in range(3):
            b = 208 + (kq*3+f)*4
            a(f"buffer_load_dwordx4 v[{b}:{b+3}], v2, s[20:23], 0 offen offset:{f*1024}")
        a("v_add_u32 v2, 3072, v2")
    a("v_add_u32 v5, 4096, v5")
    a("v_add_u32 v14, 4096, v14")
    a("s_sub_u32 s31, s31, 1")
    a("s_cmp_lg_u32 s31, 0")
    a(f"s_cbranch_scc1 L_{name}_main")
    a("s_nop 7")
    a("s_waitcnt vmcnt(0)")
    a("s_mul_i32 s28, s26, 96")
    a("s_mul_i32 s29, s27, 24")
    a("s_add_u32 s28, s28, s29")
    a("v_and_b32 v6, 15, v1")
    a("v_lshrrev_b32 v7, 4, v1")
    a("v_lshl_add_u32 v8, v7, 2, s28")
    a("v_add_u32 v9, 16, v8")
    def hp_addr(vf, vd):
        a(f"v_lshrrev_b32 v10, 4, v{vf}")
        a("v_lshlrev_b32 v10, 6, v10")
        a(f"v_bfe_u32 v11, v{vf}, 3, 1")
        a("v_lshl_add_u32 v10, v11, 5, v10")
        a("v_add_u32 v10, v10, v6")
        a("v_lshlrev_b32 v10, 4, v10")
        a(f"v_and_b32 v11, 4, v{vf}")
        a(f"v_lshl_add_u32 v{vd}, v11, 1, v10")
        a("s_lshl_b32 s29, s25, 2")
        a("s_mul_i32 s29, s29, 88064")
        a(f"s_add_u32 s29, s29, {HP}")
        a(f"v_add_u32 v{vd}, s29, v{vd}")
        a("v_bfrev_b32 v11, 1")
        a(f"v_cmp_gt_u32 vcc, 1376, v{vf}")
        a("s_nop 1")
        a(f"v_cndmask_b32 v{vd}, v11, v{vd}, vcc")
    hp_addr(8, 12)
    hp_addr(9, 13)
    a("v_cmp_gt_u32 vcc, 2, v7")
    a("v_bfrev_b32 v11, 1")
    a("s_nop 0")
    a("v_cndmask_b32 v13, v11, v13, vcc")
    def silu_mul(g, u, out):
        for r in range(0, 4, 2):
            rnd2(a, g+r, g+r+1, 16)
            rnd2(a, u+r, u+r+1, 16)
        for r in range(4):
            a(f"v_mul_f32 v17, 0xbfb8aa3b, v{g+r}")
            a("v_exp_f32 v17, v17")
            a("s_nop 0")
            a("v_add_f32 v17, 1.0, v17")
            a("v_rcp_f32 v17, v17")
            a("s_nop 0")
            a(f"v_mul_f32 v{g+r}, v{g+r}, v17")
        for r in range(0, 4, 2):
            rnd2(a, g+r, g+r+1, 16)
        for r in range(4):
            a(f"v_mul_f32 v{g+r}, v{g+r}, v{u+r}")
        a(f"v_cvt_pk_bf16_f32 v{out}, v{g}, v{g+1}")
        a(f"v_cvt_pk_bf16_f32 v{out+1}, v{g+2}, v{g+3}")
    for mt in range(8):
        g = 64 + (0*8+mt)*4
        u = 64 + (1*8+mt)*4
        silu_mul(g, u, 20)
        off = (mt//2) * 88064 + (mt & 1) * 256
        a(f"v_add_u32 v22, {off}, v12")
        a("buffer_store_dwordx2 v[20:21], v22, s[20:23], 0 offen")
        m = 64 + (2*8+mt)*4
        for r in range(4):
            a(f"v_mov_b32 v{24+r}, v{m+r}")
        a("s_nop 1")
        for r in range(4):
            a(f"v_permlane32_swap_b32 v{m+r}, v{24+r}")
        a("s_nop 1")
        silu_mul(m, 24, 20)
        a(f"v_add_u32 v22, {off}, v13")
        a("buffer_store_dwordx2 v[20:21], v22, s[20:23], 0 offen")
        a("s_nop 1")
    a("s_waitcnt vmcnt(0)")
    a(f"L_{name}_done:")
    a("s_endpgm")
```

```python
from common import *

FFN2_LDS = 65536

def gen_ffn2(a, name, layer):
    a(f"{name}:")
    a("s_cmp_ge_u32 s2, 256")
    a(f"s_cbranch_scc1 L_{name}_done")
    a("s_load_dwordx2 s[4:5], s[0:1], 80")
    a("s_load_dwordx2 s[8:9], s[0:1], 96")
    a("s_lshr_b32 s25, s2, 3")
    a("s_and_b32 s26, s2, 7")
    a("s_waitcnt lgkmcnt(0)")
    srd(a, 20, 8, 9, WS_BYTES)
    if layer == 1:
        srd(a, 12, 8, 9, WS_BYTES)
        ooff, xres = X2, X1
    else:
        srd(a, 12, 4, 5, 0x200000)
        ooff, xres = 0, X3
    a("v_lshrrev_b32 v1, 6, v0")
    a("s_nop 0")
    a("v_readfirstlane_b32 s27, v1")
    a("v_and_b32 v1, 63, v0")
    a("s_nop 2")
    a("s_mul_i32 s28, s27, 22")
    a("s_cmp_eq_u32 s27, 3")
    a("s_cselect_b32 s29, 1, 0")
    a("s_sub_u32 s28, s28, s29")
    a("s_cmp_ge_u32 s27, 2")
    a("s_cselect_b32 s29, 21, 22")
    a("s_lshl_b32 s30, s25, 1")
    a("s_mul_i32 s30, s30, 86")
    a("s_add_u32 s30, s30, s28")
    a("s_lshl_b32 s30, s30, 10")
    a(f"s_add_u32 s30, s30, {HP}")
    a("v_lshl_add_u32 v2, v1, 4, s30")
    a("v_add_u32 v3, 88064, v2")
    a("s_lshl_b32 s30, s26, 1")
    a("s_mul_i32 s30, s30, 86")
    a("s_add_u32 s30, s30, s28")
    a("s_lshl_b32 s30, s30, 10")
    a(f"s_add_u32 s30, s30, {WP2}")
    a("v_lshl_add_u32 v4, v1, 4, s30")
    a("v_add_u32 v5, 88064, v4")
    for r in range(64):
        a(f"v_mov_b32 v{64+r}, 0")
    D = 5
    def ld(i):
        b = 128 + (i % D) * 16
        for j, vv in enumerate((2, 3, 4, 5)):
            a(f"buffer_load_dwordx4 v[{b+4*j}:{b+4*j+3}], v{vv}, s[20:23], 0 offen offset:{(i%4)*1024}")
        if i % 4 == 3:
            for vv in (2, 3, 4, 5):
                a(f"v_add_u32 v{vv}, 4096, v{vv}")
    for i in range(D - 1):
        ld(i)
    for i in range(22):
        if i == 21:
            a("s_cmp_eq_u32 s29, 21")
            a(f"s_cbranch_scc1 L_{name}_skip")
        if i + D - 1 < 22:
            ld(i + D - 1)
            a(f"s_waitcnt vmcnt({4*(D-1)})")
        else:
            a(f"s_waitcnt vmcnt({4*(21-i)})")
        b = 128 + (i % D) * 16
        for dt in range(2):
            for tt in range(2):
                acc = 64 + (dt*2+tt)*16
                a(f"v_mfma_f32_32x32x16_bf16 v[{acc}:{acc+15}], v[{b+8+4*dt}:{b+11+4*dt}], v[{b+4*tt}:{b+3+4*tt}], v[{acc}:{acc+15}]")
    a(f"L_{name}_skip:")
    a("s_nop 15")
    a("s_lshl_b32 s30, s27, 14")
    a("v_lshl_add_u32 v6, v1, 2, s30")
    for r in range(64):
        a(f"ds_write_b32 v6, v{64+r} offset:{256*r}")
    a("s_waitcnt lgkmcnt(0)")
    a("s_barrier")
    a("s_lshl_b32 s30, s27, 12")
    a("v_lshl_add_u32 v6, v1, 2, s30")
    for w in range(4):
        for r in range(16):
            a(f"ds_read_b32 v{64+16*w+r}, v6 offset:{16384*w + 256*r}")
    a("s_and_b32 s30, s27, 1")
    a("s_lshl_b32 s30, s30, 5")
    a("s_lshl_b32 s31, s25, 6")
    a("s_add_u32 s30, s30, s31")
    a("v_and_b32 v7, 31, v1")
    a("v_add_u32 v7, s30, v7")
    a("v_lshlrev_b32 v7, 10, v7")
    a("s_lshr_b32 s30, s27, 1")
    a("s_lshl_b32 s30, s30, 5")
    a("s_lshl_b32 s31, s26, 6")
    a("s_add_u32 s30, s30, s31")
    a("v_lshrrev_b32 v8, 5, v1")
    a("v_lshl_add_u32 v8, v8, 2, s30")
    a("v_lshl_add_u32 v7, v8, 1, v7")
    a(f"v_add_u32 v9, {xres}, v7")
    a(f"v_add_u32 v10, {ooff}, v7")
    for rq in range(4):
        a(f"buffer_load_dwordx2 v[{16+2*rq}:{17+2*rq}], v9, s[20:23], 0 offen offset:{16*rq}")
    a("s_waitcnt vmcnt(0) lgkmcnt(0)")
    for rq in range(4):
        for rr in range(4):
            r = 4*rq + rr
            a(f"v_add_f32 v{64+r}, v{64+r}, v{80+r}")
            a(f"v_add_f32 v{96+r}, v{96+r}, v{112+r}")
            a(f"v_add_f32 v{64+r}, v{64+r}, v{96+r}")
            a(f"v_cvt_pk_bf16_f32 v30, v{64+r}, v{64+r}")
            a(f"v_lshlrev_b32 v{64+r}, 16, v30")
            if rr % 2 == 0:
                a(f"v_lshlrev_b32 v31, 16, v{16+2*rq+rr//2}")
            else:
                a(f"v_and_b32 v31, 0xffff0000, v{16+2*rq+rr//2}")
            a(f"v_add_f32 v{64+r}, v{64+r}, v31")
        a(f"v_cvt_pk_bf16_f32 v{32+2*rq}, v{64+4*rq}, v{65+4*rq}")
        a(f"v_cvt_pk_bf16_f32 v{33+2*rq}, v{66+4*rq}, v{67+4*rq}")
        a(f"buffer_store_dwordx2 v[{32+2*rq}:{33+2*rq}], v10, s[12:15], 0 offen offset:{16*rq}")
    a("s_waitcnt vmcnt(0)")
    a(f"L_{name}_done:")
    a("s_endpgm")
```

```python
import sys
from common import *
from k_prep import gen_prep
from k_conv import gen_conv, CONV_LDS
from k_ffn1 import gen_ffn1, gen_ln, FFN1_LDS
from k_ffn2 import gen_ffn2, FFN2_LDS

NAME = "interleave_layers__ssm_conv_h3__swiglu_ffn__prompt"
hdr = open(f"cdna_kernels/{NAME}.s.ref").read().split("; Override launch")[0]
launch = f"""; @launch kernel=prep_kernel grid=(1320,1,1) block=(256,1,1) lds=9216
; @launch kernel=conv_kernel grid=(256,1,1) block=(256,1,1) lds={CONV_LDS}
; @launch kernel=ln1_kernel grid=(128,1,1) block=(256,1,1) lds=16640
; @launch kernel=ffn1a_kernel grid=(240,1,1) block=(256,1,1) lds={FFN1_LDS}
; @launch kernel=ffn2a_kernel grid=(256,1,1) block=(256,1,1) lds={FFN2_LDS}
; @launch kernel=ln2_kernel grid=(128,1,1) block=(256,1,1) lds=16640
; @launch kernel=ffn1b_kernel grid=(240,1,1) block=(256,1,1) lds={FFN1_LDS}
; @launch kernel=ffn2b_kernel grid=(256,1,1) block=(256,1,1) lds={FFN2_LDS}
"""
out = hdr + launch + '.amdgcn_target "amdgcn-amd-amdhsa--gfx950"\n.text\n'
kernels = []
def add(name, fn, vgpr):
    global out
    a = Asm()
    a.uid = len(kernels) * 1000
    fn(a)
    out += f".globl {name}\n.p2align 8\n.type {name},@function\n" + a.text()
    kernels.append((name, vgpr))
add("prep_kernel", gen_prep, 128)
add("conv_kernel", gen_conv, 128)
add("ln1_kernel", lambda a: gen_ln(a, "ln1_kernel", 1), 160)
add("ln2_kernel", lambda a: gen_ln(a, "ln2_kernel", 2), 160)
add("ffn1a_kernel", lambda a: gen_ffn1(a, "ffn1a_kernel", 1), 256)
add("ffn2a_kernel", lambda a: gen_ffn2(a, "ffn2a_kernel", 1), 208)
add("ffn1b_kernel", lambda a: gen_ffn1(a, "ffn1b_kernel", 2), 256)
add("ffn2b_kernel", lambda a: gen_ffn2(a, "ffn2b_kernel", 2), 208)
out += '.section .rodata,"a"\n'
for name, vgpr in kernels:
    out += ".p2align 6\n" + kernel_desc(name, vgpr)
open(f"cdna_kernels/{NAME}.s", "w").write(out)
print("written", len(out))
```

```python
from common import *

QS = 4160 + 32
QCH = 8 * QS
UCH = 96 * 80
QBASE = 0
UBASE = 2 * QCH
RBASE = UBASE + 2 * UCH
CONV_LDS = RBASE + 16384

def gen_conv(a):
    a("conv_kernel:")
    a("s_cmp_ge_u32 s2, 256")
    a("s_cbranch_scc1 L_conv_done")
    a("s_load_dwordx2 s[4:5], s[0:1], 32")
    a("s_load_dwordx2 s[6:7], s[0:1], 40")
    a("s_load_dwordx2 s[8:9], s[0:1], 96")
    a("s_waitcnt lgkmcnt(0)")
    a("s_lshl_b32 s3, s2, 13")
    a("s_add_u32 s4, s4, s3")
    a("s_addc_u32 s5, s5, 0")
    srd(a, 12, 4, 5, 8192)
    srd(a, 16, 6, 7, 1024)
    srd(a, 20, 8, 9, WS_BYTES)
    a("v_lshlrev_b32 v1, 4, v0")
    a(f"v_add_u32 v2, s3, v1")
    a("buffer_load_dwordx4 v[4:7], v2, s[20:23], 0 offen")
    a("v_add_u32 v2, 4096, v2")
    a("buffer_load_dwordx4 v[8:11], v2, s[20:23], 0 offen")
    a("v_mov_b32 v12, 0")
    a("v_mov_b32 v13, 0")
    a("v_mov_b32 v14, 0")
    a("v_mov_b32 v15, 0")
    a("v_lshrrev_b32 v3, 7, v0")
    a("v_and_b32 v16, 127, v0")
    a(f"v_mul_u32_u24 v3, {UCH}, v3")
    a("v_lshl_add_u32 v3, v16, 4, v3")
    a(f"v_add_u32 v3, {UBASE}, v3")
    a(f"ds_write_b128 v3, v[12:15]")
    a(f"ds_write_b128 v3, v[12:15] offset:512")
    a("s_waitcnt vmcnt(0)")
    a("v_lshrrev_b32 v16, 2, v0")
    a("v_and_b32 v1, 3, v0")
    a("v_mul_u32_u24 v16, 80, v16")
    a("v_lshl_add_u32 v1, v1, 4, v16")
    a(f"v_add_u32 v1, {UBASE+2560}, v1")
    a(f"ds_write_b128 v1, v[4:7]")
    a(f"ds_write_b128 v1, v[8:11] offset:{UCH}")
    a("s_mov_b32 s30, 0x03020504")
    a("s_mov_b32 s23, s23")
    a("s_mov_b32 s31, 0x01000302")
    for it in range(3):
        a(f"v_add_u32 v1, {256*it}, v0")
        if it == 2:
            a("v_cmp_gt_u32 vcc, 520, v1")
            a("s_and_saveexec_b64 s[24:25], vcc")
            a("s_cbranch_execz L_conv_qdone")
        a("v_cmp_le_u32 vcc, 260, v1")
        a("s_nop 1")
        a("v_cndmask_b32 v2, 0, 1, vcc")
        a("v_mul_u32_u24 v3, 260, v2")
        a("v_sub_u32 v3, v1, v3")
        a("v_lshlrev_b32 v16, 3, v3")
        a("v_sub_u32 v17, 2040, v16")
        a("v_sub_u32 v18, 2048, v16")
        a("v_mov_b32 v20, -1")
        for (e, dst) in ((17, 4), (18, 8)):
            a(f"v_lshlrev_b32 v19, 1, v{e}")
            a("v_lshl_add_u32 v19, v2, 12, v19")
            a(f"v_cmp_gt_u32 vcc, 2048, v{e}")
            a("s_nop 1")
            a("v_cndmask_b32 v19, v20, v19, vcc")
            a(f"buffer_load_dwordx4 v[{dst}:{dst+3}], v19, s[12:15], 0 offen")
        a(f"v_mul_u32_u24 v21, {QCH}, v2")
        a("v_lshl_add_u32 v21, v3, 4, v21")
        a("s_waitcnt vmcnt(0)")
        for cp in range(8):
            for d in range(4):
                x = 8 + cp - 2*d
                if x % 2 == 0:
                    a(f"v_perm_b32 v{24+d}, v{4+x//2}, v{4+x//2-1}, s30")
                else:
                    a(f"v_perm_b32 v{24+d}, v{4+(x-1)//2}, v{4+(x-1)//2}, s31")
            a(f"ds_write_b128 v21, v[24:27] offset:{QBASE + cp*QS}")
            a("s_nop 1")
    a("L_conv_qdone:")
    a("s_mov_b64 exec, -1")
    a("s_waitcnt lgkmcnt(0)")
    a("s_barrier")
    a("v_lshrrev_b32 v1, 6, v0")
    a("s_nop 0")
    a("v_readfirstlane_b32 s26, v1")
    a("s_nop 3")
    a("s_lshr_b32 s27, s26, 1")
    a("s_and_b32 s28, s26, 1")
    a("v_and_b32 v1, 63, v0")
    a("v_and_b32 v2, 31, v1")
    a("v_lshrrev_b32 v3, 5, v1")
    a("v_and_b32 v4, 7, v2")
    a(f"v_mul_u32_u24 v4, {QS}, v4")
    a("v_lshrrev_b32 v5, 3, v2")
    a("v_sub_u32 v5, v3, v5")
    a("v_lshlrev_b32 v5, 4, v5")
    a("v_add_u32 v4, v4, v5")
    a(f"s_mul_i32 s29, s27, {QCH}")
    a(f"s_add_u32 s29, s29, {QBASE + 4096}")
    a("s_lshl_b32 s24, s28, 6")
    a("s_sub_u32 s29, s29, s24")
    a("v_add_u32 v4, s29, v4")
    a("v_mul_u32_u24 v5, 80, v2")
    a("v_lshl_add_u32 v5, v3, 4, v5")
    a(f"s_mul_i32 s29, s27, {UCH}")
    a(f"s_add_u32 s29, s29, {UBASE + 2560}")
    a("s_mul_i32 s24, s28, 80")
    a("s_sub_u32 s29, s29, s24")
    a("v_add_u32 v5, s29, v5")
    for r in range(32):
        a(f"v_mov_b32 v{64+r}, 0")
    def rd(setb, both):
        a(f"ds_read_b128 v[{setb}:{setb+3}], v4 offset:0")
        a(f"ds_read_b128 v[{setb+4}:{setb+7}], v4 offset:32")
        if both:
            a(f"ds_read_b128 v[{setb+8}:{setb+11}], v5 offset:0")
            a(f"ds_read_b128 v[{setb+12}:{setb+15}], v5 offset:32")
        a(f"ds_read_b128 v[{setb+16}:{setb+19}], v5 offset:2560")
        a(f"ds_read_b128 v[{setb+20}:{setb+23}], v5 offset:2592")
        a("v_subrev_u32 v4, 128, v4")
        a("v_subrev_u32 v5, 160, v5")
    def mm(setb, both):
        if both:
            a(f"v_mfma_f32_32x32x16_bf16 v[64:79], v[{setb}:{setb+3}], v[{setb+8}:{setb+11}], v[64:79]")
            a(f"v_mfma_f32_32x32x16_bf16 v[64:79], v[{setb+4}:{setb+7}], v[{setb+12}:{setb+15}], v[64:79]")
        a(f"v_mfma_f32_32x32x16_bf16 v[80:95], v[{setb}:{setb+3}], v[{setb+16}:{setb+19}], v[80:95]")
        a(f"v_mfma_f32_32x32x16_bf16 v[80:95], v[{setb+4}:{setb+7}], v[{setb+20}:{setb+23}], v[80:95]")
    sets = (8, 96)
    rd(sets[0], True)
    for it in range(32):
        both = it < 16
        if it + 1 < 32:
            nb = it + 1 < 16
            rd(sets[(it+1) % 2], nb)
            a(f"s_waitcnt lgkmcnt({6 if nb else 4})")
        else:
            a("s_waitcnt lgkmcnt(0)")
        mm(sets[it % 2], both)
    a("s_nop 15")
    a("s_lshl_b32 s24, s27, 1")
    a("s_xor_b32 s29, s28, 1")
    a("s_add_u32 s29, s24, s29")
    a("s_lshl_b32 s29, s29, 12")
    a(f"s_add_u32 s29, s29, {RBASE}")
    a("v_lshl_add_u32 v6, v1, 2, s29")
    a("s_add_u32 s29, s24, s28")
    a("s_lshl_b32 s29, s29, 12")
    a(f"s_add_u32 s29, s29, {RBASE}")
    a("v_lshl_add_u32 v7, v1, 2, s29")
    a("s_cmp_eq_u32 s28, 0")
    a("s_cbranch_scc1 L_conv_h0w")
    for r in range(16):
        a(f"ds_write_b32 v6, v{64+r} offset:{256*r}")
        a(f"v_mov_b32 v{64+r}, v{80+r}")
    a("s_branch L_conv_wdone")
    a("L_conv_h0w:")
    for r in range(16):
        a(f"ds_write_b32 v6, v{80+r} offset:{256*r}")
    a("L_conv_wdone:")
    a("s_waitcnt lgkmcnt(0)")
    a("s_barrier")
    for r in range(16):
        a(f"ds_read_b32 v{8+r}, v7 offset:{256*r}")
    a("s_lshl_b32 s24, s28, 5")
    a("v_add_u32 v30, s24, v2")
    a("v_mul_u32_u24 v31, 80, v30")
    a("v_lshl_add_u32 v31, v3, 3, v31")
    a(f"s_mul_i32 s29, s27, {UCH}")
    a(f"s_add_u32 s29, s29, {UBASE + 2560}")
    a("v_add_u32 v31, s29, v31")
    for rq in range(4):
        a(f"ds_read_b64 v[{40+2*rq}:{41+2*rq}], v31 offset:{16*rq}")
    a("s_lshl_b32 s24, s2, 1")
    a("s_add_u32 s24, s24, s27")
    a("s_lshl_b32 s29, s24, 1")
    a("v_mov_b32 v32, s29")
    a("buffer_load_ushort v33, v32, s[16:19], 0 offen")
    a("v_lshlrev_b32 v34, 5, v30")
    a("v_lshl_add_u32 v34, v3, 2, v34")
    a("v_lshlrev_b32 v34, 1, v34")
    a("s_lshl_b32 s29, s24, 12")
    a("v_add_u32 v34, s29, v34")
    a(f"v_add_u32 v34, {Z}, v34")
    a("s_waitcnt vmcnt(0) lgkmcnt(0)")
    a("v_lshlrev_b32 v33, 16, v33")
    for r in range(16):
        rq, rr = r // 4, r % 4
        a(f"v_add_f32 v35, v{64+r}, v{8+r}")
        a("v_cvt_pk_bf16_f32 v36, v35, v35")
        a("v_lshlrev_b32 v35, 16, v36")
        if rr % 2 == 0:
            a(f"v_lshlrev_b32 v37, 16, v{40+2*rq+rr//2}")
        else:
            a(f"v_and_b32 v37, 0xffff0000, v{40+2*rq+rr//2}")
        a("v_mul_f32 v37, v37, v33")
        a("v_cvt_pk_bf16_f32 v36, v37, v37")
        a("v_lshlrev_b32 v37, 16, v36")
        a("v_add_f32 v35, v35, v37")
        a(f"v_cvt_pk_bf16_f32 v{48+r}, v35, v35")
    a("s_mov_b32 s25, 0x05040100")
    for rq in range(4):
        a(f"v_perm_b32 v{40+2*rq}, v{49+4*rq}, v{48+4*rq}, s25")
        a(f"v_perm_b32 v{41+2*rq}, v{51+4*rq}, v{50+4*rq}, s25")
        a(f"buffer_store_dwordx2 v[{40+2*rq}:{41+2*rq}], v34, s[20:23], 0 offen offset:{16*rq}")
    a("s_waitcnt vmcnt(0)")
    a("L_conv_done:")
    a("s_endpgm")
```

```python
from common import *
from k_prep import rnd2, unpack8

FFN1_LDS = 131072

def row_reduce(a, v):
    for sh in (8, 4, 2, 1):
        a("s_nop 1")
        a(f"v_add_f32_dpp v{v}, v{v}, v{v} row_ror:{sh} row_mask:0xf bank_mask:0xf")

def layernorm(a, src, dst, tmp):
    s1, s2 = tmp, tmp + 1
    a(f"v_mov_b32 v{s1}, 0")
    a(f"v_mov_b32 v{s2}, 0")
    for i in range(32):
        a(f"v_add_f32 v{s1}, v{s1}, v{src+i}")
        a(f"v_fmac_f32 v{s2}, v{src+i}, v{src+i}")
    row_reduce(a, s1)
    row_reduce(a, s2)
    a(f"v_mul_f32 v{s1}, 0x3b000000, v{s1}")
    a(f"v_mul_f32 v{s2}, 0x3b000000, v{s2}")
    a(f"v_fma_f32 v{s2}, -v{s1}, v{s1}, v{s2}")
    a(f"v_max_f32 v{s2}, 0, v{s2}")
    rnd2(a, s1, s2, tmp + 2)
    a(f"v_add_f32 v{s2}, 0x3727c5ac, v{s2}")
    rnd2(a, s2, s2, tmp + 2)
    a(f"v_sqrt_f32 v{s2}, v{s2}")
    a("s_nop 0")
    rnd2(a, s2, s2, tmp + 2)
    a(f"v_rcp_f32 v{s2}, v{s2}")
    a("s_nop 0")
    for i in range(0, 32, 2):
        a(f"v_sub_f32 v{dst+i}, v{src+i}, v{s1}")
        a(f"v_sub_f32 v{dst+i+1}, v{src+i+1}, v{s1}")
        rnd2(a, dst+i, dst+i+1, tmp + 2)
        a(f"v_mul_f32 v{dst+i}, v{dst+i}, v{s2}")
        a(f"v_mul_f32 v{dst+i+1}, v{dst+i+1}, v{s2}")
        rnd2(a, dst+i, dst+i+1, tmp + 2)


AP = 0x1600000
def gen_ln(a, name, layer):
    a(f"{name}:")
    a("s_cmp_ge_u32 s2, 128")
    a(f"s_cbranch_scc1 L_{name}_done")
    a("s_load_dwordx2 s[4:5], s[0:1], 0")
    a("s_load_dwordx2 s[8:9], s[0:1], 96")
    a("s_waitcnt lgkmcnt(0)")
    srd(a, 20, 8, 9, WS_BYTES)
    if layer == 1:
        srd(a, 12, 4, 5, 0x200000)
        xoff = 0
    else:
        srd(a, 12, 8, 9, WS_BYTES)
        xoff = X2
    xout = X1 if layer == 1 else X3
    a("v_lshrrev_b32 v1, 6, v0")
    a("s_nop 0")
    a("v_readfirstlane_b32 s27, v1")
    a("v_and_b32 v1, 63, v0")
    a("v_lshrrev_b32 v5, 4, v1")
    a("v_and_b32 v6, 15, v1")
    a("s_lshl_b32 s29, s2, 4")
    a("s_lshl_b32 s30, s27, 2")
    a("s_add_u32 s29, s29, s30")
    a("v_add_u32 v7, s29, v5")
    a("v_lshlrev_b32 v7, 10, v7")
    a("v_lshl_add_u32 v7, v6, 4, v7")
    a(f"v_add_u32 v8, {xoff}, v7")
    a(f"v_add_u32 v9, {Z}, v7")
    a(f"v_add_u32 v10, {xout}, v7")
    a("v_lshrrev_b32 v11, 2, v6")
    a("v_lshlrev_b32 v11, 6, v11")
    a("v_and_b32 v12, 3, v6")
    a("v_lshl_add_u32 v11, v12, 4, v11")
    a("v_add_u32 v11, v5, v11")
    a("v_add_u32 v11, s30, v11")
    a("v_lshlrev_b32 v11, 4, v11")
    a("s_lshl_b32 s29, s2, 14")
    a(f"s_add_u32 s29, s29, {AP}")
    a("v_add_u32 v11, s29, v11")
    a("v_add_u32 v13, 4096, v11")
    for q in range(4):
        a(f"buffer_load_dwordx4 v[{16+4*q}:{19+4*q}], v8, s[12:15], 0 offen offset:{256*q}")
    a("v_lshlrev_b32 v9, 12, v0")
    a("s_lshl_b32 s29, s2, 5")
    a(f"s_add_u32 s29, s29, {Z}")
    a("v_add_u32 v9, s29, v9")
    a("v_add_u32 v12, 0x100000, v9")
    a("buffer_load_dwordx4 v[32:35], v9, s[20:23], 0 offen")
    a("buffer_load_dwordx4 v[36:39], v9, s[20:23], 0 offen offset:16")
    a("buffer_load_dwordx4 v[40:43], v12, s[20:23], 0 offen")
    a("buffer_load_dwordx4 v[44:47], v12, s[20:23], 0 offen offset:16")
    a("v_lshlrev_b32 v12, 1, v0")
    a("s_waitcnt vmcnt(0)")
    for i in range(2):
        for t in range(16):
            op = "ds_write_b16" if t % 2 == 0 else "ds_write_b16_d16_hi"
            a(f"{op} v12, v{32+8*i+t//2} offset:{t*1040 + 512*i}")
    a("v_add_u32 v12, s30, v5")
    a("v_mul_u32_u24 v12, 1040, v12")
    a("v_lshl_add_u32 v12, v6, 4, v12")
    a("s_waitcnt lgkmcnt(0)")
    a("s_barrier")
    for q in range(4):
        a(f"ds_read_b128 v[{32+4*q}:{35+4*q}], v12 offset:{256*q}")
    a("s_waitcnt lgkmcnt(0)")
    for q in range(4):
        unpack8(a, 16+4*q, 64+8*q)
        unpack8(a, 32+4*q, 96+8*q)
    layernorm(a, 64, 128, 60)
    for i in range(0, 32, 2):
        a(f"v_mul_f32 v{128+i}, v{128+i}, v{96+i}")
        a(f"v_mul_f32 v{129+i}, v{129+i}, v{97+i}")
        rnd2(a, 128+i, 129+i, 62)
        a(f"v_add_f32 v{64+i}, v{64+i}, v{128+i}")
        a(f"v_add_f32 v{65+i}, v{65+i}, v{129+i}")
        a(f"v_cvt_pk_bf16_f32 v{16+i//2}, v{64+i}, v{65+i}")
        a(f"v_lshlrev_b32 v{64+i}, 16, v{16+i//2}")
        a(f"v_and_b32 v{65+i}, 0xffff0000, v{16+i//2}")
    for q in range(4):
        a(f"buffer_store_dwordx4 v[{16+4*q}:{19+4*q}], v10, s[20:23], 0 offen offset:{256*q}")
    layernorm(a, 64, 128, 60)
    for i in range(0, 32, 2):
        a(f"v_cvt_pk_bf16_f32 v{32+i//2}, v{128+i}, v{129+i}")
    for q in range(4):
        a(f"buffer_store_dwordx4 v[{32+4*q}:{35+4*q}], v{11 if q < 1 else 13}, s[20:23], 0 offen offset:{0 if q < 1 else 0}")
        if q >= 1 and q < 3:
            a("v_add_u32 v13, 4096, v13")
    a("s_waitcnt vmcnt(0)")
    a(f"L_{name}_done:")
    a("s_endpgm")

def gen_ffn1(a, name, layer):
    a(f"{name}:")
    a("s_cmp_ge_u32 s2, 240")
    a(f"s_cbranch_scc1 L_{name}_done")
    a("s_load_dwordx2 s[4:5], s[0:1], 0")
    a("s_load_dwordx2 s[8:9], s[0:1], 96")
    a("s_mov_b32 s24, 0x11111112")
    a("s_mul_hi_u32 s25, s2, s24")
    a("s_mul_i32 s26, s25, 15")
    a("s_sub_u32 s26, s2, s26")
    a("s_waitcnt lgkmcnt(0)")
    srd(a, 20, 8, 9, WS_BYTES)
    if layer == 1:
        srd(a, 12, 4, 5, 0x200000)
        xoff = 0
    else:
        srd(a, 12, 8, 9, WS_BYTES)
        xoff = X2
    xout = X1 if layer == 1 else X3
    a("v_lshrrev_b32 v1, 6, v0")
    a("s_nop 0")
    a("v_readfirstlane_b32 s27, v1")
    a("v_and_b32 v1, 63, v0")
    a("s_lshl_b32 s28, s26, 2")
    a("s_add_u32 s28, s28, s27")
    a("s_mul_i32 s28, s28, 49152")
    a(f"s_add_u32 s28, s28, {WP1}")
    a("v_lshl_add_u32 v2, v1, 4, s28")
    for ks in range(4):
        for f in range(3):
            r = 208 + (ks*3+f)*4
            a(f"buffer_load_dwordx4 v[{r}:{r+3}], v2, s[20:23], 0 offen offset:{(ks*3+f)*1024 if (ks*3+f) < 4 else 0}" if (ks*3+f) < 4 else
              f"buffer_load_dwordx4 v[{r}:{r+3}], v3, s[20:23], 0 offen offset:{(ks*3+f-4)*1024 if (ks*3+f) < 8 else 0}" if (ks*3+f) < 8 else
              f"buffer_load_dwordx4 v[{r}:{r+3}], v4, s[20:23], 0 offen offset:{(ks*3+f-8)*1024}")
            if ks*3+f == 0:
                a("v_add_u32 v3, 4096, v2")
                a("v_add_u32 v4, 8192, v2")
    a("v_add_u32 v2, 12288, v2")
    a("s_lshl_b32 s29, s25, 17")
    a("s_lshl_b32 s30, s27, 15")
    a("s_add_u32 s29, s29, s30")
    a(f"s_add_u32 s29, s29, {AP}")
    a("v_lshl_add_u32 v7, v1, 4, s29")
    for i in range(32):
        if i % 4 == 0:
            a(f"s_add_u32 s31, s30, {i*1024}")
            a("s_mov_b32 m0, s31")
            a("s_nop 0")
        a(f"buffer_load_dwordx4 v7, s[20:23], 0 offen offset:{(i%4)*1024} lds")
        if i % 4 == 3:
            a("v_add_u32 v7, 4096, v7")
    a("s_waitcnt vmcnt(0)")
    a("s_waitcnt lgkmcnt(0)")
    a("s_barrier")
    for r in range(96):
        a(f"v_mov_b32 v{64+r}, 0")
    a("v_lshlrev_b32 v5, 4, v1")
    a("v_add_u32 v14, 0x10000, v5")
    a("s_mov_b32 s31, 4")
    a(f"L_{name}_main:")
    for kq in range(4):
        for mt in range(8):
            a(f"ds_read_b128 v[{160+4*mt}:{163+4*mt}], v{5 if mt < 4 else 14} offset:{((mt%4)*16+kq)*1024}")
        a("s_waitcnt vmcnt(9) lgkmcnt(0)")
        for f in range(3):
            b = 208 + (kq*3+f)*4
            for mt in range(8):
                acc = 64 + (f*8+mt)*4
                a(f"v_mfma_f32_16x16x32_bf16 v[{acc}:{acc+3}], v[{b}:{b+3}], v[{160+4*mt}:{163+4*mt}], v[{acc}:{acc+3}]")
        for f in range(3):
            b = 208 + (kq*3+f)*4
            a(f"buffer_load_dwordx4 v[{b}:{b+3}], v2, s[20:23], 0 offen offset:{f*1024}")
        a("v_add_u32 v2, 3072, v2")
    a("v_add_u32 v5, 4096, v5")
    a("v_add_u32 v14, 4096, v14")
    a("s_sub_u32 s31, s31, 1")
    a("s_cmp_lg_u32 s31, 0")
    a(f"s_cbranch_scc1 L_{name}_main")
    a("s_nop 7")
    a("s_waitcnt vmcnt(0)")
    a("s_mul_i32 s28, s26, 96")
    a("s_mul_i32 s29, s27, 24")
    a("s_add_u32 s28, s28, s29")
    a("v_and_b32 v6, 15, v1")
    a("v_lshrrev_b32 v7, 4, v1")
    a("v_lshl_add_u32 v8, v7, 2, s28")
    a("v_add_u32 v9, 16, v8")
    def hp_addr(vf, vd):
        a(f"v_lshrrev_b32 v10, 4, v{vf}")
        a("v_lshlrev_b32 v10, 6, v10")
        a(f"v_bfe_u32 v11, v{vf}, 3, 1")
        a("v_lshl_add_u32 v10, v11, 5, v10")
        a("v_add_u32 v10, v10, v6")
        a("v_lshlrev_b32 v10, 4, v10")
        a(f"v_and_b32 v11, 4, v{vf}")
        a(f"v_lshl_add_u32 v{vd}, v11, 1, v10")
        a("s_lshl_b32 s29, s25, 2")
        a("s_mul_i32 s29, s29, 88064")
        a(f"s_add_u32 s29, s29, {HP}")
        a(f"v_add_u32 v{vd}, s29, v{vd}")
        a("v_bfrev_b32 v11, 1")
        a(f"v_cmp_gt_u32 vcc, 1376, v{vf}")
        a("s_nop 1")
        a(f"v_cndmask_b32 v{vd}, v11, v{vd}, vcc")
    hp_addr(8, 12)
    hp_addr(9, 13)
    a("v_cmp_gt_u32 vcc, 2, v7")
    a("v_bfrev_b32 v11, 1")
    a("s_nop 0")
    a("v_cndmask_b32 v13, v11, v13, vcc")
    def silu_mul(g, u, out):
        for r in range(0, 4, 2):
            rnd2(a, g+r, g+r+1, 16)
            rnd2(a, u+r, u+r+1, 16)
        for r in range(4):
            a(f"v_mul_f32 v17, 0xbfb8aa3b, v{g+r}")
            a("v_exp_f32 v17, v17")
            a("s_nop 0")
            a("v_add_f32 v17, 1.0, v17")
            a("v_rcp_f32 v17, v17")
            a("s_nop 0")
            a(f"v_mul_f32 v{g+r}, v{g+r}, v17")
        for r in range(0, 4, 2):
            rnd2(a, g+r, g+r+1, 16)
        for r in range(4):
            a(f"v_mul_f32 v{g+r}, v{g+r}, v{u+r}")
        a(f"v_cvt_pk_bf16_f32 v{out}, v{g}, v{g+1}")
        a(f"v_cvt_pk_bf16_f32 v{out+1}, v{g+2}, v{g+3}")
    for mt in range(8):
        g = 64 + (0*8+mt)*4
        u = 64 + (1*8+mt)*4
        silu_mul(g, u, 20)
        off = (mt//2) * 88064 + (mt & 1) * 256
        a(f"v_add_u32 v22, {off}, v12")
        a("buffer_store_dwordx2 v[20:21], v22, s[20:23], 0 offen")
        m = 64 + (2*8+mt)*4
        for r in range(4):
            a(f"v_mov_b32 v{24+r}, v{m+r}")
        a("s_nop 1")
        for r in range(4):
            a(f"v_permlane32_swap_b32 v{m+r}, v{24+r}")
        a("s_nop 1")
        silu_mul(m, 24, 20)
        a(f"v_add_u32 v22, {off}, v13")
        a("buffer_store_dwordx2 v[20:21], v22, s[20:23], 0 offen")
        a("s_nop 1")
    a("s_waitcnt vmcnt(0)")
    a(f"L_{name}_done:")
    a("s_endpgm")
```
